```python
import torch

def _softmax(x, axis=-1):
    return torch.softmax(x, dim=axis)
def _gelu(x):
    return torch.nn.functional.gelu(x, approximate="tanh")
def _silu(x):
    return torch.nn.functional.silu(x)
def _sigmoid(x):
    return torch.sigmoid(x)
def _layernorm(x, axis=-1, eps=1e-5):
    m = x.mean(dim=axis, keepdim=True)
    v = x.var(dim=axis, keepdim=True, unbiased=False)
    return (x - m) / torch.sqrt(v + eps)
def _scatter_add(tgt, idx, src, axis=0):
    return tgt.clone().index_add_(axis, idx, src)
def _segment_sum(src, seg, n):
    out = torch.zeros((n,) + src.shape[1:], dtype=src.dtype)
    return out.index_add_(0, seg, src)
def _pad(x, pw):
    flat = tuple(v for pair in reversed(pw) for v in pair)
    return torch.nn.functional.pad(x, flat)

kernel_name = 'standalone__sequential_behavior_din__recsys'

def setup_inputs():

    _w = (lambda a: (lambda t: t.to(torch.bfloat16) if t.is_floating_point() else t)(torch.as_tensor(a)))
    B, L, D = 4096, 20, 128
    H = D
    return {
        "target": _w((lambda *s: torch.randn(*s, dtype=torch.bfloat16) * 1.6)(B, D)),
        "hist": _w((lambda *s: torch.randn(*s, dtype=torch.bfloat16) * 1.6)(B, L, D)),
        "mask": _w((lambda lo, hi, *s: torch.randint(lo, hi, s))(0, 2, B, L).to(float)),
        "w1": _w((lambda *s: torch.randn(*s, dtype=torch.bfloat16) * 1.6)(4 * D, H) * (4 * D) ** -0.5),
        "b1": _w((lambda *s: torch.randn(*s, dtype=torch.bfloat16) * 6.4)(H) * 0.1),
        "w2": _w((lambda *s: torch.randn(*s, dtype=torch.bfloat16) * 0.05)(H, 1) * H ** -0.5),
        "b2": _w((lambda *s: torch.randn(*s, dtype=torch.bfloat16) * 0.2)(1) * 0.1),
    }

def reference(target, hist, mask, w1, b1, w2, b2):
    L = hist.shape[1]
    tgt = (lambda x, n, axis: torch.repeat_interleave(x, n, dim=axis))(target[:, None, :], L, axis=1)
    feat = torch.concatenate([hist, tgt, hist - tgt, hist * tgt], axis=-1)
    h = _sigmoid(feat @ w1 + b1)
    scores = (h @ w2 + b2)[..., 0] * mask
    return torch.einsum('bl,bld->bd', scores, hist)
```

```python
import re

TRANS = ("v_exp_", "v_log_", "v_rcp_", "v_rsq_", "v_sqrt_", "v_sin_", "v_cos_")
REG_RE = re.compile(r"^(-|abs\()?([vsa])(?:(\d+)|\[(\d+):(\d+)\])\)?$")


def regs_of(tok):
    tok = tok.strip()
    if tok in ("vcc",):
        return {"vcc"}
    if tok == "exec":
        return {"exec"}
    if tok == "m0":
        return {"m0"}
    m = REG_RE.match(tok)
    if not m:
        return set()
    k = m.group(2)
    if m.group(3) is not None:
        return {f"{k}{m.group(3)}"}
    return {f"{k}{i}" for i in range(int(m.group(4)), int(m.group(5)) + 1)}


class Ins:
    def __init__(self, text):
        self.text = text
        parts = text.split(None, 1)
        self.op = parts[0]
        rest = parts[1] if len(parts) > 1 else ""
        ops = []
        depth = 0
        cur = ""
        for ch in rest:
            if ch == "[":
                depth += 1
            if ch == "]":
                depth -= 1
            if ch == "," and depth == 0:
                ops.append(cur.strip())
                cur = ""
            else:
                cur += ch
        if cur.strip():
            ops.append(cur.strip())
        self.mods = ""
        if ops:
            last = ops[-1].split(None, 1)
            ops[-1] = last[0]
            self.mods = last[1] if len(last) > 1 else ""
        self.ops = ops
        op = self.op
        self.is_mfma = op.startswith("v_mfma")
        self.is_valu = op.startswith("v_") and not self.is_mfma
        self.is_trans = op.startswith(TRANS)
        self.is_dot = op.startswith("v_dot")
        self.is_ds = op.startswith("ds_")
        self.is_vmem = op.startswith(("buffer_", "global_"))
        self.is_smem = op.startswith(("s_load", "s_memtime", "s_memrealtime", "s_buffer_load"))
        self.is_salu = op.startswith("s_") and not self.is_smem
        self.is_sdwa_dst = "dst_sel:WORD" in self.mods or "dst_sel:BYTE" in self.mods
        self.is_dpp = "_dpp" in op
        self.lds_dma = self.is_vmem and (" lds" in " " + self.mods or "load_lds" in op)
        R = [regs_of(o) for o in ops]
        w, r = set(), set()
        if self.is_ds:
            if op.startswith(("ds_read", "ds_bpermute", "ds_permute", "ds_swizzle")):
                w = R[0]
                r = set().union(*R[1:])
                if "d16" in op:
                    r |= R[0]
            else:
                r = set().union(*R)
        elif self.is_vmem:
            if "store" in op or self.lds_dma or "atomic" in op:
                r = set().union(*R)
                if self.lds_dma:
                    r |= {"m0"}
            else:
                w = R[0]
                r = set().union(*R[1:])
                if "d16" in op:
                    r |= R[0]
        elif op.startswith(("s_cmp", "s_bitcmp", "s_cbranch", "s_branch", "s_barrier", "s_waitcnt", "s_nop",
                            "s_endpgm", "s_setprio", "s_setpc", "s_sleep")):
            r = set().union(*R) if R else set()
        elif op.startswith("v_permlane") and "swap" in op:
            w = R[0] | R[1]
            r = R[0] | R[1]
        else:
            w = R[0] if R else set()
            r = set().union(*R[1:]) if len(R) > 1 else set()
            if op.startswith(("v_fmac", "v_dot2c", "v_writelane")) or "UNUSED_PRESERVE" in self.mods:
                r |= R[0]
            if op.startswith(("v_add_co", "v_sub_co", "v_addc_co")):
                w |= R[1]
            if op.startswith("s_and_saveexec"):
                w |= {"exec"}
        self.w, self.r = w, r
        self.passes = 0
        if self.is_mfma:
            self.passes = 8 if "32x32x16" in op else 4 if ("16x16x32" in op or "16x16x16" in op) else 2 if "4x4x4" in op else None
            assert self.passes
            self.srcab = R[1] | R[2]
            self.srcc = R[3]
        self.wide_store = self.is_vmem and "store" in op and ("x3" in op or "x4" in op)


def need_states(p, c):
    n = 0
    if p.is_mfma:
        tab = {2: (5, 2, 4, 1), 4: (8, 0, 6, 3), 8: (12, 0, 10, 7)}[p.passes]
        if c.is_mfma:
            if p.w & c.srcab:
                n = max(n, tab[0])
            if p.w & c.srcc:
                n = max(n, tab[1] if (p.w == c.srcc and p.passes == c.passes) else tab[2])
            elif p.w & c.w:
                n = max(n, tab[2])
        else:
            if p.w & (c.r | c.w):
                n = max(n, tab[0])
            if (c.is_valu or c.is_ds or c.is_vmem) and (p.srcc & c.w):
                n = max(n, tab[3])
    if p.is_valu:
        vw = {x for x in p.w if x[0] in "va" and x != "vcc"}
        sw = p.w - vw
        if c.is_mfma and (vw & c.r):
            n = max(n, 2)
        if p.is_trans and c.is_valu and not c.is_trans and (vw & c.r):
            n = max(n, 1)
        if p.is_sdwa_dst and c.is_valu and (vw & (c.r | c.w)):
            n = max(n, 1)
        if p.is_dot and (vw & (c.r | c.w)):
            same_c = c.op == p.op and len(c.ops) > 3 and not (vw & (regs_of(c.ops[1]) | regs_of(c.ops[2])))
            if not same_c:
                n = max(n, 3)
        if c.op.startswith(("v_readlane", "v_readfirstlane")) and (vw & c.r):
            n = max(n, 1)
        if (c.op.startswith("v_permlane") or c.is_dpp) and (vw & c.r):
            n = max(n, 2)
        if sw:
            if c.is_valu and (sw & c.r):
                n = max(n, 4 if c.op.startswith(("v_readlane", "v_writelane")) else 2)
            if c.is_vmem and (sw & c.r):
                n = max(n, 5)
            if c.is_salu and (sw & c.r):
                n = max(n, 1)
    if p.is_salu and "m0" in p.w and c.lds_dma:
        n = max(n, 1)
    if p.wide_store and (p.r & c.w):
        n = max(n, 2)
    return n


class Emitter:
    def __init__(self):
        self.lines = []
        self.hist = []
        self.lg = []
        self.smem = False
        self.smem_regs = set()
        self.vm = []
        self.count = 0

    def raw(self, text):
        self.lines.append(text)

    def comment(self, text):
        self.lines.append("    ; " + text)

    def _emit(self, ins):
        states = 1
        if ins.op == "s_nop":
            states = int(ins.ops[0]) + 1
        self.lines.append("    " + ins.text)
        self.hist.append((ins, states))
        self.hist = self.hist[-24:]
        self.count += 1

    def wait(self, vm=None, lg=None):
        parts = []
        if vm is not None and len(self.vm) > vm:
            parts.append(f"vmcnt({vm})")
            self.vm = self.vm[len(self.vm) - vm:]
        if lg is not None and (len(self.lg) > lg or (self.smem and lg == 0)):
            if self.smem:
                lg = 0
            lg = min(lg, 15)
            parts.append(f"lgkmcnt({lg})")
            self.lg = self.lg[len(self.lg) - lg:]
            if lg == 0:
                self.smem = False
                self.smem_regs = set()
        if parts:
            self._emit(Ins("s_waitcnt " + " ".join(parts)))

    def wait_tag(self, tag):
        idx = [i for i, d in enumerate(self.vm) if tag in d]
        if idx:
            self.wait(vm=len(self.vm) - 1 - idx[-1])

    def __call__(self, text, tag=None):
        for line in text.strip().split("\n"):
            line = line.split(";")[0].strip()
            if line:
                self.one(line, tag)

    def one(self, text, tag=None):
        c = Ins(text)
        touched = c.r | c.w
        vm = lg = None
        for i, d in enumerate(self.vm):
            if d & touched:
                vm = len(self.vm) - 1 - i
        for i, d in enumerate(self.lg):
            if d & touched:
                lg = len(self.lg) - 1 - i
        if self.smem and (self.smem_regs & touched):
            lg = 0
        self.wait(vm, lg)
        need = 0
        dist = 0
        for p, st in reversed(self.hist):
            need = max(need, need_states(p, c) - dist)
            dist += st
        while need > 0:
            k = min(need, 16)
            self._emit(Ins(f"s_nop {k-1}"))
            need -= k
        self._emit(c)
        if c.is_ds:
            self.lg.append(set(c.w))
        if c.is_smem:
            self.smem = True
            self.smem_regs |= c.w
        if c.is_vmem:
            d = set(c.w)
            if tag:
                d.add(tag)
            self.vm.append(d)
            assert len(self.vm) <= 63

    def barrier(self):
        self.wait(lg=0)
        self("s_barrier")

    def label(self, name):
        self.lines.append(name + ":")

    def snapshot(self):
        return (list(self.hist), [set(x) for x in self.lg], self.smem, set(self.smem_regs), [set(x) for x in self.vm])

    def restore(self, s):
        self.hist, self.lg, self.smem, self.smem_regs, self.vm = list(s[0]), [set(x) for x in s[1]], s[2], set(s[3]), [set(x) for x in s[4]]

    def text(self):
        return "\n".join(self.lines) + "\n"
```

```python
import sys
from asmlib import Emitter

NAME = "standalone__sequential_behavior_din__recsys"
HEADER = open("cdna_kernels/%s.s.ref" % NAME).read().split("; Override launch")[0]

REC = 1296
TAB = 16 * REC
TILE = 16 * 528
PB = TAB + 2560
HB = PB + 2 * TILE
STG = HB + 2 * TILE
STG_AC, STG_WD, STG_BC = STG, STG + 32768, STG + 65536
SM = HB + 10 * TILE
PART = SM + 16 * REC
LDS = STG + 98304
assert PART + 5120 <= LDS and SM >= STG_BC and LDS <= 163840
CS = 0xBFB8AA3B


class Regs:
    def __init__(self, start):
        self.n = start
    def get(self, k=1, align=1):
        self.n = (self.n + align - 1) // align * align
        r = self.n
        self.n += k
        return r


def vr(b, n=1):
    return f"v{b}" if n == 1 else f"v[{b}:{b+n-1}]"


def gen(diag=False, touch=True):
    e = Emitter()
    R = Regs(1)
    lane, c16, r4, n32, hf = (R.get() for _ in range(5))
    t0, t1, t2, t3 = (R.get() for _ in range(4))
    a_pw, a_xr, a_tabp, a_tabx, a_ti, a_tic, a_part, a_tfc, a_c16x16 = (R.get() for _ in range(9))
    a_pw2, a_xr2 = R.get(), R.get()
    vdiag = R.get()
    vb2 = R.get()
    w1e = R.get(6)
    w2f = R.get(8, 4)
    wf = R.get(64, 4)
    acc = R.get(16, 4)
    bb = R.get(24, 4)
    land = R.get(24, 4)
    tmp = R.get(48, 4)
    pk = R.get(8, 4)
    sc = R.get(4, 4)
    misc = R.get(16, 4)
    nv = R.n
    assert nv <= 256, nv
    nstamp = [0]

    def stamp():
        if diag:
            e.wait(lg=0)
            e("s_memtime s[60:61]")
            e(f"v_writelane_b32 v{vdiag}, s60, {nstamp[0]}")
        nstamp[0] += 1

    if diag:
        e("s_memtime s[62:63]")
    e("s_cmp_ge_u32 s2, 256")
    e("s_cbranch_scc1 L_end")
    e("s_load_dwordx16 s[4:19], s[0:1], 0")
    if diag:
        e("s_load_dwordx2 s[64:65], s[0:1], 72")
    e(f"v_lshrrev_b32 v{t0}, 6, v0")
    e(f"v_and_b32 v{lane}, 63, v0")
    e(f"v_readfirstlane_b32 s3, v{t0}")
    e(f"v_and_b32 v{c16}, 15, v0")
    e(f"v_lshrrev_b32 v{r4}, 4, v{lane}")
    e(f"v_and_b32 v{n32}, 31, v0")
    e(f"v_lshrrev_b32 v{hf}, 5, v{lane}")
    e("s_lshr_b32 s28, s3, 2")
    e("s_and_b32 s29, s3, 3")
    o_m, o_mo, o_t, o_a, o_b, o_c, o_d, o_b1, o_w2, o_pf, own_i, own_w0, own_bl, a_ac, a_bc0, a_bc1 = range(misc, misc + 16)
    e("s_mul_i32 s31, s2, 640")
    e(f"v_lshl_add_u32 v{o_m}, v{lane}, 1, s31")
    e("s_min_u32 s42, s3, 4")
    e("s_lshl_b32 s43, s42, 7")
    e(f"v_add_u32 v{o_mo}, s43, v{o_m}")
    e("s_lshl_b32 s43, s2, 12")
    e(f"v_lshl_add_u32 v{o_t}, v0, 3, s43")
    e("s_lshl_b32 s44, s3, 12")
    e(f"v_lshl_add_u32 v{o_a}, v{lane}, 4, s44")
    e(f"v_add_u32 v{o_b}, 0x8000, v{o_a}")
    e(f"v_add_u32 v{o_c}, 0x10000, v{o_a}")
    e(f"v_lshlrev_b32 v{t0}, 6, v{r4}")
    e(f"v_xor_b32 v{t0}, v{t0}, v{o_a}")
    e(f"v_add_u32 v{o_d}, 0x18000, v{t0}")
    e(f"v_add_u32 v{a_ac}, {STG_AC}, v{t0}")
    e(f"v_add_u32 v{a_bc0}, {STG_BC}, v{t0}")
    e(f"v_xor_b32 v{a_bc1}, 32, v{a_bc0}")
    e(f"s_add_u32 s45, s44, {STG_WD}")
    e("s_mov_b32 m0, s45")
    e("s_lshl_b32 s45, s3, 5")
    e(f"v_lshl_add_u32 v{o_b1}, v{r4}, 3, s45")
    e("s_lshl_b32 s45, s29, 6")
    e(f"v_lshl_add_u32 v{o_w2}, v{hf}, 3, s45")
    e("s_lshr_b32 s45, s2, 3")
    e("s_and_b32 s45, s45, 15")
    e("s_lshl_b32 s45, s45, 13")
    e(f"v_lshl_add_u32 v{o_pf}, v{lane}, 7, s45")
    e("s_lshl_b32 s45, s42, 6")
    e(f"v_add_u32 v{own_i}, s45, v{lane}")
    e(f"v_mul_u32_u24 v{own_bl}, 3277, v{own_i}")
    e(f"v_lshrrev_b32 v{own_bl}, 16, v{own_bl}")
    e(f"v_mul_u32_u24 v{own_bl}, {REC}, v{own_bl}")
    e("s_mul_i32 s45, s2, 81920")
    e(f"v_lshl_add_u32 v{own_w0}, v{own_i}, 8, s45")
    e.wait(lg=0)
    if diag:
        e(f"v_writelane_b32 v{vdiag}, s62, 63")
    stamp()
    mk = tmp + 40
    if touch:
        e("s_cmp_lg_u32 s3, 7")
        e("s_cbranch_scc1 L_notouch")
        e.raw(f"    global_load_dword v{pk}, v{o_pf}, s[10:11]")
        e.label("L_notouch")
    for j in range(5):
        e(f"global_load_ushort v{mk+j}, v{o_m}, s[8:9] offset:{128*j}")
    e(f"global_load_ushort v{mk+5}, v{o_mo}, s[8:9]")
    tv = tmp + 46
    e(f"global_load_dwordx2 {vr(tv,2)}, v{o_t}, s[4:5]")
    wa, wc, wb = wf, wf + 16, wf + 32
    for i in range(4):
        e(f"global_load_dwordx4 {vr(wa+4*i,4)}, v{o_a}, s[10:11] offset:{1024*i}")
        e(f"global_load_dwordx4 {vr(wc+4*i,4)}, v{o_c}, s[10:11] offset:{1024*i}")
        e(f"global_load_dwordx4 {vr(wb+4*i,4)}, v{o_b}, s[10:11] offset:{1024*i}")
        if i == 1:
            table(e, locals())
    for i in range(4):
        e(f"global_load_lds_dwordx4 v{o_d}, s[10:11] offset:{1024*i}", tag="wd")
    vb1 = acc
    e(f"global_load_dwordx2 {vr(vb1,2)}, v{o_b1}, s[12:13]")
    for q in range(4):
        e(f"global_load_dwordx2 {vr(w2f+2*q,2)}, v{o_w2}, s[14:15] offset:{16*q}")
    e(f"v_mov_b32 v{t0}, 0")
    e(f"global_load_ushort v{vb2}, v{t0}, s[16:17]")
    for j in range(3):
        for u in range(2):
            e(f"buffer_load_dwordx4 {vr(land+8*j+4*u,4)}, v{bb+4*j+2*u}, s[20:23], 0 offen nt")
    stamp()
    e("s_mov_b32 s46, 0xffff0000")
    e(f"s_mov_b32 s47, {CS}")
    e(f"v_lshlrev_b32 v{tmp}, 16, v{tv}")
    e(f"v_and_b32 v{tmp+1}, s46, v{tv}")
    e(f"v_lshlrev_b32 v{tmp+2}, 16, v{tv+1}")
    e(f"v_and_b32 v{tmp+3}, s46, v{tv+1}")
    for k in range(4):
        e(f"v_mul_f32 v{tmp+k}, s47, v{tmp+k}")
    e(f"v_lshrrev_b32 v{t0}, 5, v0")
    e(f"v_mul_u32_u24 v{t0}, {REC}, v{t0}")
    e(f"v_lshl_add_u32 v{t1}, v{n32}, 3, v{t0}")
    e(f"ds_write_b64 v{t1}, {vr(tv,2)} offset:1024")
    e(f"v_and_b32 v{t1}, 1, v0")
    e(f"v_lshl_add_u32 v{t0}, v{t1}, 8, v{t0}")
    e(f"v_lshrrev_b32 v{t1}, 1, v{n32}")
    e(f"v_lshl_add_u32 v{t0}, v{t1}, 4, v{t0}")
    e(f"ds_write_b128 v{t0}, {vr(tmp,4)} offset:512")
    e("s_mov_b32 s48, 0x00003f80")
    e("s_mov_b32 s49, 0x3f800000")
    e(f"v_mov_b32 v{tmp+32}, s47")
    e(f"v_mov_b32 v{tmp+33}, s47")
    for i in range(4):
        cu, x, y = tmp, tmp + 8, tmp + 16
        o = tmp + 24
        for d in range(4):
            e(f"v_lshlrev_b32 v{cu+2*d}, 16, v{wc+4*i+d}")
            e(f"v_and_b32 v{cu+2*d+1}, s46, v{wc+4*i+d}")
        for d in range(4):
            e(f"v_dot2_f32_bf16 v{x+2*d}, v{wa+4*i+d}, s48, v{cu+2*d}")
            e(f"v_dot2_f32_bf16 v{x+2*d+1}, v{wa+4*i+d}, s49, v{cu+2*d+1}")
        for d in range(4):
            e(f"v_dot2_f32_bf16 v{y+2*d}, v{wb+4*i+d}, s48, v{cu+2*d} neg_lo:[0,0,1]")
            e(f"v_dot2_f32_bf16 v{y+2*d+1}, v{wb+4*i+d}, s49, v{cu+2*d+1} neg_lo:[0,0,1]")
        for d in range(4):
            e(f"v_pk_mul_f32 {vr(x+2*d,2)}, {vr(x+2*d,2)}, {vr(tmp+32,2)}")
        for d in range(4):
            e(f"v_cvt_pk_bf16_f32 v{o+4+d}, v{y+2*d}, v{y+2*d+1}")
        e(f"ds_write_b128 v{a_bc0 if i < 2 else a_bc1}, {vr(o+4,4)} offset:{1024*i}")
        for d in range(4):
            e(f"v_cvt_pk_bf16_f32 v{o+d}, v{x+2*d}, v{x+2*d+1}")
        e(f"ds_write_b128 v{a_ac}, {vr(o,4)} offset:{1024*i}")
    stamp()
    i16r, cc = t2, t3
    e(f"v_lshrrev_b32 v{i16r}, 2, v{c16}")
    e(f"v_and_b32 v{cc}, 3, v0")
    a_wf, a_bf, a_tb, a_tw = misc, misc + 1, misc + 2, misc + 3
    e(f"v_lshl_add_u32 v{t0}, v{hf}, 3, v{i16r}")
    e(f"v_lshlrev_b32 v{t0}, 8, v{t0}")
    e(f"v_xor_b32 v{t1}, s29, v{i16r}")
    e(f"v_lshl_add_u32 v{t0}, v{t1}, 6, v{t0}")
    e(f"v_and_b32 v{t1}, 1, v{r4}")
    e(f"v_lshl_add_u32 v{t0}, v{t1}, 5, v{t0}")
    e(f"v_lshl_add_u32 v{t0}, v{cc}, 3, v{t0}")
    e(f"v_add_u32 v{a_wf}, {STG}, v{t0}")
    e(f"v_lshlrev_b32 v{t1}, 1, v{t1}")
    e(f"v_lshl_or_b32 v{t1}, v{i16r}, 2, v{t1}")
    e(f"v_lshrrev_b32 v{t0}, 1, v{cc}")
    e("s_lshl_b32 s45, s3, 1")
    e(f"v_add_u32 v{t0}, s45, v{t0}")
    e(f"v_xor_b32 v{t0}, v{t0}, v{t1}")
    e(f"v_lshlrev_b32 v{t0}, 4, v{t0}")
    e(f"v_lshl_add_u32 v{t1}, v{r4}, 3, v{i16r}")
    e(f"v_lshl_add_u32 v{t0}, v{t1}, 8, v{t0}")
    e(f"v_and_b32 v{t1}, 1, v0")
    e(f"v_lshl_add_u32 v{t0}, v{t1}, 3, v{t0}")
    e(f"v_add_u32 v{a_bf}, {STG_BC}, v{t0}")
    e(f"v_mul_u32_u24 v{t0}, {REC}, v{c16}")
    e(f"v_lshl_add_u32 v{a_tb}, v{r4}, 4, v{t0}")
    e("s_lshl_b32 s45, s3, 6")
    e(f"v_add_u32 v{a_tw}, s45, v{a_tb}")
    e(f"s_mul_i32 s45, s28, {TILE}")
    e(f"s_add_u32 s45, s45, {PB}")
    e(f"v_mul_u32_u24 v{t0}, 528, v{hf}")
    e(f"v_lshl_add_u32 v{t0}, v{n32}, 4, v{t0}")
    e(f"v_add_u32 v{a_xr}, s45, v{t0}")
    e("s_lshl_b32 s50, s29, 7")
    e("s_add_u32 s45, s45, s50")
    e(f"v_mul_u32_u24 v{t0}, 528, v{c16}")
    e(f"v_lshl_add_u32 v{t0}, v{r4}, 4, v{t0}")
    e(f"v_add_u32 v{a_pw}, s45, v{t0}")
    e(f"v_add_u32 v{a_pw2}, {6*TILE}, v{a_pw}")
    e(f"v_add_u32 v{a_xr2}, {6*TILE}, v{a_xr}")
    e(f"v_lshl_add_u32 v{a_tic}, v{hf}, 4, s50")
    e("s_lshl_b32 s45, s28, 8")
    e(f"s_add_u32 s45, s45, {TAB+4}")
    e(f"v_lshl_add_u32 v{a_tabx}, v{n32}, 3, s45")
    e("s_lshl_b32 s45, s28, 9")
    e("s_lshl_b32 s50, s29, 2")
    e("s_add_u32 s45, s45, s50")
    e(f"s_add_u32 s45, s45, {PART}")
    e(f"v_lshl_add_u32 v{a_part}, v{n32}, 4, s45")
    e(f"v_and_b32 v{vb1+3}, s46, v{vb1+1}")
    e(f"v_lshlrev_b32 v{vb1+2}, 16, v{vb1+1}")
    e(f"v_and_b32 v{vb1+1}, s46, v{vb1}")
    e(f"v_lshlrev_b32 v{vb1}, 16, v{vb1}")
    e(f"v_xor_b32 v{t0}, v{i16r}, v{r4}")
    e(f"v_and_b32 v{t0}, 1, v{t0}")
    e(f"v_subrev_u32 v{t0}, 1, v{t0}")
    for q in range(8):
        e(f"v_and_b32 v{w2f+q}, v{t0}, v{w2f+q}")
    e(f"v_lshlrev_b32 v{vb2}, 16, v{vb2}")
    e.wait_tag("wd")
    e.barrier()
    stamp()
    bf, tb = tmp, tmp + 16
    for s in range(4):
        e(f"ds_read_b128 {vr(tb+4*s,4)}, v{a_tb} offset:{1024+64*s}")
        for j in range(2):
            e(f"ds_read_b64_tr_b16 {vr(bf+4*s+2*j,2)}, v{a_bf} offset:{8192*s+1024*j}")
    for s in range(4):
        e(f"v_mfma_f32_16x16x32_bf16 {vr(vb1,4)}, {vr(bf+4*s,4)}, {vr(tb+4*s,4)}, {vr(vb1,4)}")
    for m in range(2):
        for s in range(8):
            for j in range(2):
                e(f"ds_read_b64_tr_b16 {vr(wf+32*m+4*s+2*j,2)}, v{a_wf} offset:{32768*m+4096*s+1024*j}")
        if m == 0:
            for k in range(4):
                e(f"v_mul_f32 v{vb1+k}, s47, v{vb1+k}")
            e(f"ds_write_b128 v{a_tw}, {vr(vb1,4)}")
    stamp()

    def P(j):
        slot = land + 8 * (j % 3)
        base, off = (a_pw, 2 * TILE * (j + 1)) if j < 3 else (a_pw2, 2 * TILE * (j + 1) - 6 * TILE)
        tf = tmp
        for u in range(2):
            e(f"v_add_u32_sdwa v{t0+u}, v{w1e+2*(j%3)+u}, v{a_c16x16} dst_sel:DWORD dst_unused:UNUSED_PAD src0_sel:WORD_0 src1_sel:DWORD")
            e(f"ds_read_b128 {vr(tf+8*u,4)}, v{t0+u} offset:512")
            e(f"ds_read_b128 {vr(tf+8*u+4,4)}, v{t0+u} offset:768")
        x = tmp + 16
        o = tmp + 24
        for u in range(2):
            h = slot + 4 * u
            e(f"ds_write_b128 v{base}, {vr(h,4)} offset:{off+64*u}")
            for d in range(4):
                e(f"v_lshlrev_b32 v{x+2*d}, 16, v{h+d}")
                e(f"v_and_b32 v{x+2*d+1}, 0xffff0000, v{h+d}")
            for k in range(8):
                e(f"v_mul_f32 v{x+k}, v{x+k}, v{tf+8*u+k}")
            for d in range(4):
                e(f"v_cvt_pk_bf16_f32 v{o+4*u+d}, v{x+2*d}, v{x+2*d+1}")
            e(f"ds_write_b128 v{a_pw}, {vr(o+4*u,4)} offset:{64*u}")
        e(f"ds_read_b32 v{a_ti}, v{a_tabx} offset:{512*j}")
        e(f"v_add_u32_sdwa v{a_ti}, v{a_ti}, v{a_tic} dst_sel:DWORD dst_unused:UNUSED_PAD src0_sel:WORD_0 src1_sel:DWORD")

    def late_load(j):
        for u in range(2):
            e(f"ds_read_b64 {vr(tmp+2*u,2)}, v{a_tabp} offset:{512*j+32*u}")
        for u in range(2):
            e(f"v_add_u32 v{tmp+2*u}, v{tmp+2*u}, v{a_c16x16}")
            e(f"v_mov_b32 v{w1e+2*(j%3)+u}, v{tmp+2*u+1}")
            e(f"buffer_load_dwordx4 {vr(land+8*(j%3)+4*u,4)}, v{tmp+2*u}, s[20:23], 0 offen nt")

    def X(j):
        base, off = (a_xr, 2 * TILE * (j + 1)) if j < 3 else (a_xr2, 2 * TILE * (j + 1) - 6 * TILE)
        def rd(s):
            if s < 8:
                e(f"ds_read_b128 {vr(bb+4*(s%6),4)}, v{base} offset:{off+1056*s}")
            else:
                e(f"ds_read_b128 {vr(bb+4*(s%6),4)}, v{a_xr} offset:{1056*(s-8)}")
        for q in range(4):
            e(f"ds_read_b128 {vr(acc+4*q,4)}, v{a_ti} offset:{32*q}")
        for s in range(6):
            rd(s)
        for s in range(16):
            e(f"v_mfma_f32_32x32x16_bf16 {vr(acc,16)}, {vr(wf+4*s,4)}, {vr(bb+4*(s%6),4)}, {vr(acc,16)}")
            if s + 6 < 16:
                rd(s + 6)

    def Y(j):
        for k in range(16):
            e(f"v_exp_f32 v{acc+k}, v{acc+k}")
        for k in range(16):
            e(f"v_add_f32 v{acc+k}, 1.0, v{acc+k}")
        for k in range(16):
            e(f"v_rcp_f32 v{acc+k}, v{acc+k}")
        for k in range(8):
            e(f"v_cvt_pk_bf16_f32 v{pk+k}, v{acc+2*k}, v{acc+2*k+1}")
        e(f"v_mfma_f32_16x16x32_bf16 {vr(sc,4)}, {vr(w2f,4)}, {vr(pk,4)}, 0")
        e(f"v_mfma_f32_16x16x32_bf16 {vr(sc,4)}, {vr(w2f+4,4)}, {vr(pk+4,4)}, {vr(sc,4)}")

    e.wait(lg=0)
    e("s_cmp_eq_u32 s28, 0")
    e("s_cbranch_scc1 L_g0")
    e("s_barrier")
    e(f"v_and_b32 v{t0}, 0xff, v0")
    e(f"v_lshrrev_b32 v{t0}, 4, v{t0}")
    e(f"v_mul_u32_u24 v{t0}, {REC}, v{t0}")
    e(f"v_lshl_add_u32 v{t0}, v{c16}, 4, v{t0}")
    e(f"v_add_u32 v{t0}, {SM}, v{t0}")
    for k in range(4):
        e(f"v_mov_b32 v{tmp+k}, 0")
    for k in range(3):
        e(f"ds_write_b128 v{t0}, {vr(tmp,4)} offset:{256*k}")
    e.wait(lg=0)
    e.label("L_g0")
    P(0)
    e.barrier()
    stamp()
    e("s_sub_u32 s51, s30, s28")
    for j in range(5):
        e(f"s_cmp_le_u32 s51, {2*j}")
        e("s_cbranch_scc1 L_final")
        X(j)
        stamp()
        e.barrier()
        stamp()
        Y(j)
        if j < 4:
            e(f"s_cmp_le_u32 s51, {2*j+2}")
            e(f"s_cbranch_scc1 L_nop{j}")
            snap = e.snapshot()
            P(j + 1)
            if j + 1 >= 2 and j + 2 < 5:
                e(f"s_cmp_le_u32 s51, {2*j+4}")
                e(f"s_cbranch_scc1 L_nop{j}")
                late_load(j + 2)
            e.label(f"L_nop{j}")
            e.hist = snap[0]
        e(f"ds_write_b32 v{a_part}, v{sc} offset:{1024*j}")
        stamp()
        e.barrier()
        stamp()
        e(f"s_cmp_eq_u32 s51, {2*j+1}")
        e("s_cbranch_scc1 L_exit")
    e.label("L_final")
    e.vm = []
    nstamp[0] = 40
    a_ft, a_fs, a_fp, a_fm, a_sl = misc, misc + 1, misc + 2, misc + 3, misc + 4
    e(f"v_lshrrev_b32 v{t0}, 1, v{cc}")
    e("s_lshl_b32 s45, s29, 2")
    e(f"v_add_u32 v{t0}, s45, v{t0}")
    e(f"v_mul_u32_u24 v{t0}, 528, v{t0}")
    e(f"v_lshl_add_u32 v{t1}, v{r4}, 2, v{i16r}")
    e(f"v_lshl_add_u32 v{t0}, v{t1}, 5, v{t0}")
    e(f"v_and_b32 v{t1}, 1, v0")
    e(f"v_lshl_add_u32 v{t0}, v{t1}, 3, v{t0}")
    e(f"v_add_u32 v{a_ft}, {HB}, v{t0}")
    e(f"v_mul_u32_u24 v{t0}, {REC}, v{c16}")
    e(f"v_lshl_add_u32 v{t0}, v{r4}, 4, v{t0}")
    e(f"v_add_u32 v{a_fs}, {SM}, v{t0}")
    e(f"v_lshlrev_b32 v{t0}, 4, v{lane}")
    e(f"v_add_u32 v{a_fp}, {PART}, v{t0}")
    e(f"v_lshlrev_b32 v{t0}, 3, v{lane}")
    e(f"v_add_u32 v{a_fm}, {TAB+4}, v{t0}")
    e(f"v_and_b32 v{t0}, 0x38, v{lane}")
    e(f"v_lshl_or_b32 v{t0}, v{t1}, 2, v{t0}")
    e(f"v_bfe_u32 v{t1}, v{lane}, 1, 2")
    e(f"v_or_b32 v{t0}, v{t0}, v{t1}")
    e(f"v_lshlrev_b32 v{t0}, 1, v{t0}")
    e(f"v_add_u32 v{a_sl}, {SM}, v{t0}")
    for k in range(8):
        e(f"v_mov_b32 v{acc+k}, 0")
    e.barrier()
    stamp()
    for jj in range(5):
        e(f"ds_read_b128 {vr(tmp+4*jj,4)}, v{a_fp} offset:{1024*jj}")
        e(f"ds_read_b32 v{tmp+20+jj}, v{a_fm} offset:{512*jj}")
    for jj in range(5):
        p = tmp + 4 * jj
        m = tmp + 20 + jj
        e(f"v_add_f32 v{p}, v{p}, v{p+1}")
        e(f"v_add_f32 v{p+2}, v{p+2}, v{p+3}")
        e(f"v_add_f32 v{p}, v{p}, v{vb2}")
        e(f"v_and_b32 v{p+1}, 0xffff0000, v{m}")
        e(f"v_add_f32 v{p}, v{p}, v{p+2}")
        e(f"v_add_u32_sdwa v{m}, v{m}, v{a_sl} dst_sel:DWORD dst_unused:UNUSED_PAD src0_sel:WORD_0 src1_sel:DWORD")
        e(f"v_mul_f32 v{p}, v{p}, v{p+1}")
        e(f"v_cvt_pk_bf16_f32 v{p}, v{p}, v{p}")
        e(f"ds_write_b16 v{m}, v{p} offset:{128*jj}")
    e.wait(lg=0)
    e("s_mov_b32 s52, s30")
    e.label("L_floop")
    e(f"ds_read_b128 {vr(bb,4)}, v{a_fs}")
    for u in range(2):
        for j2 in range(2):
            e(f"ds_read_b64_tr_b16 {vr(bb+4+4*u+2*j2,2)}, v{a_ft} offset:{1056*u+16*j2}")
    e(f"v_add_u32 v{a_fs}, 64, v{a_fs}")
    e(f"v_add_u32 v{a_ft}, {TILE}, v{a_ft}")
    e("s_sub_u32 s52, s52, 1")
    e("s_cmp_lg_u32 s52, 0")
    for u in range(2):
        e(f"v_mfma_f32_16x16x32_bf16 {vr(acc+4*u,4)}, {vr(bb+4+4*u,4)}, {vr(bb,4)}, {vr(acc+4*u,4)}")
    e("s_cbranch_scc1 L_floop")
    e("s_lshl_b32 s45, s2, 12")
    e("s_lshl_b32 s50, s29, 6")
    e("s_add_u32 s45, s45, s50")
    e(f"v_lshl_add_u32 v{t0}, v{c16}, 8, s45")
    e(f"v_lshl_add_u32 v{t0}, v{r4}, 3, v{t0}")
    for u in range(2):
        e(f"v_cvt_pk_bf16_f32 v{pk+2*u}, v{acc+4*u}, v{acc+4*u+1}")
        e(f"v_cvt_pk_bf16_f32 v{pk+2*u+1}, v{acc+4*u+2}, v{acc+4*u+3}")
        e(f"global_store_dwordx2 v{t0}, {vr(pk+2*u,2)}, s[18:19] offset:{32*u}")
    stamp()
    e.label("L_exit")
    if diag:
        e("s_lshl_b32 s45, s2, 11")
        e(f"v_lshl_add_u32 v{t0}, v0, 2, s45")
        e(f"global_store_dword v{t0}, v{vdiag}, s[64:65]")
    e.label("L_end")
    body = e.text()
    nfv = (nv + 7) // 8 * 8
    return HEADER + f"""; @launch grid=(256,1,1) block=(512,1,1) lds={LDS}
.amdgcn_target "amdgcn-amd-amdhsa--gfx950"
.text
.globl {NAME}_kernel
.p2align 8
.type {NAME}_kernel,@function
{NAME}_kernel:
{body}    s_endpgm
.section .rodata,"a"
.p2align 6
.amdhsa_kernel {NAME}_kernel
  .amdhsa_next_free_vgpr {nfv}
  .amdhsa_next_free_sgpr 80
  .amdhsa_accum_offset {nfv}
  .amdhsa_group_segment_fixed_size 0
  .amdhsa_kernarg_size 80
  .amdhsa_user_sgpr_count 2
  .amdhsa_user_sgpr_kernarg_segment_ptr 1
  .amdhsa_system_sgpr_workgroup_id_x 1
  .amdhsa_float_denorm_mode_32 3
.end_amdhsa_kernel
"""


def table(e, L):
    g = lambda k: L[k]
    mk, t0, t1, t2, t3 = g("mk"), g("t0"), g("t1"), g("t2"), g("t3")
    own_i, own_w0, own_bl = g("own_i"), g("own_w0"), g("own_bl")
    bb, w1e, a_tabp, a_c16x16, c16, r4, tmp = g("bb"), g("w1e"), g("a_tabp"), g("a_c16x16"), g("c16"), g("r4"), g("tmp")
    stamp = g("stamp")
    e("s_mov_b32 s20, s6")
    e("s_and_b32 s21, s7, 0xffff")
    e(f"s_mov_b32 s22, {4096*20*256}")
    e("s_mov_b32 s23, 0x20000")
    e(f"v_lshlrev_b32 v{a_c16x16}, 4, v{c16}")
    e("s_lshl_b32 s45, s28, 8")
    e("s_lshl_b32 s50, s29, 6")
    e("s_add_u32 s45, s45, s50")
    e(f"s_add_u32 s45, s45, {TAB}")
    e(f"v_lshl_add_u32 v{a_tabp}, v{r4}, 3, s45")
    e(f"v_mov_b32 v{t3}, 0x7fffff00")
    for j in range(5):
        e(f"v_cmp_neq_f16 s[{32+2*j}:{33+2*j}], 0, v{mk+j}")
    e(f"v_cmp_neq_f16 vcc, 0, v{mk+5}")
    stamp()
    e("s_mov_b32 s52, 0")
    e("s_mov_b32 s53, 0")
    for j in range(5):
        e(f"s_bcnt1_i32_b64 s54, s[{32+2*j}:{33+2*j}]")
        e("s_add_u32 s53, s53, s54")
        if j < 4:
            e(f"s_cmp_gt_u32 s42, {j}")
            e("s_cselect_b32 s52, s53, s52")
    e(f"v_mbcnt_lo_u32_b32 v{t0}, vcc_lo, 0")
    e(f"v_mbcnt_hi_u32_b32 v{t0}, vcc_hi, v{t0}")
    e(f"v_add_u32 v{t0}, s52, v{t0}")
    e(f"v_sub_u32 v{t1}, v{own_i}, v{t0}")
    e(f"v_add_u32 v{t1}, s53, v{t1}")
    e(f"v_cndmask_b32 v{t0}, v{t1}, v{t0}, vcc")
    e(f"v_cndmask_b32 v{tmp}, v{t3}, v{own_w0}, vcc")
    e(f"v_lshl_or_b32 v{tmp+1}, v{mk+5}, 16, v{own_bl}")
    e(f"v_lshlrev_b32 v{t0}, 3, v{t0}")
    e(f"ds_write_b64 v{t0}, v[{tmp}:{tmp+1}] offset:{TAB}")
    e("s_add_u32 s30, s53, 31")
    e("s_lshr_b32 s30, s30, 5")
    e("s_max_u32 s30, s30, 1")
    e.barrier()
    for j in range(3):
        for u in range(2):
            e(f"ds_read_b64 v[{bb+4*j+2*u}:{bb+4*j+2*u+1}], v{a_tabp} offset:{512*j+32*u}")
    for j in range(3):
        for u in range(2):
            e(f"v_add_u32 v{bb+4*j+2*u}, v{bb+4*j+2*u}, v{a_c16x16}")
            e(f"v_mov_b32 v{w1e+2*j+u}, v{bb+4*j+2*u+1}")
    stamp()


if __name__ == "__main__":
    out = sys.argv[1]
    open(out, "w").write(gen(diag="diag" in sys.argv[2:], touch="notouch" not in sys.argv[2:]))
```

```python
import re

TRANS = ("v_exp_", "v_log_", "v_rcp_", "v_rsq_", "v_sqrt_", "v_sin_", "v_cos_")
REG_RE = re.compile(r"^(-|abs\()?([vsa])(?:(\d+)|\[(\d+):(\d+)\])\)?$")


def regs_of(tok):
    tok = tok.strip()
    if tok in ("vcc",):
        return {"vcc"}
    if tok == "exec":
        return {"exec"}
    if tok == "m0":
        return {"m0"}
    m = REG_RE.match(tok)
    if not m:
        return set()
    k = m.group(2)
    if m.group(3) is not None:
        return {f"{k}{m.group(3)}"}
    return {f"{k}{i}" for i in range(int(m.group(4)), int(m.group(5)) + 1)}


class Ins:
    def __init__(self, text):
        self.text = text
        parts = text.split(None, 1)
        self.op = parts[0]
        rest = parts[1] if len(parts) > 1 else ""
        ops = []
        depth = 0
        cur = ""
        for ch in rest:
            if ch == "[":
                depth += 1
            if ch == "]":
                depth -= 1
            if ch == "," and depth == 0:
                ops.append(cur.strip())
                cur = ""
            else:
                cur += ch
        if cur.strip():
            ops.append(cur.strip())
        self.mods = ""
        if ops:
            last = ops[-1].split(None, 1)
            ops[-1] = last[0]
            self.mods = last[1] if len(last) > 1 else ""
        self.ops = ops
        op = self.op
        self.is_mfma = op.startswith("v_mfma")
        self.is_valu = op.startswith("v_") and not self.is_mfma
        self.is_trans = op.startswith(TRANS)
        self.is_dot = op.startswith("v_dot")
        self.is_ds = op.startswith("ds_")
        self.is_vmem = op.startswith(("buffer_", "global_"))
        self.is_smem = op.startswith(("s_load", "s_memtime", "s_memrealtime", "s_buffer_load"))
        self.is_salu = op.startswith("s_") and not self.is_smem
        self.is_sdwa_dst = "dst_sel:WORD" in self.mods or "dst_sel:BYTE" in self.mods
        self.is_dpp = "_dpp" in op
        self.lds_dma = self.is_vmem and (" lds" in " " + self.mods or "load_lds" in op)
        R = [regs_of(o) for o in ops]
        w, r = set(), set()
        if self.is_ds:
            if op.startswith(("ds_read", "ds_bpermute", "ds_permute", "ds_swizzle")):
                w = R[0]
                r = set().union(*R[1:])
                if "d16" in op:
                    r |= R[0]
            else:
                r = set().union(*R)
        elif self.is_vmem:
            if "store" in op or self.lds_dma or "atomic" in op:
                r = set().union(*R)
                if self.lds_dma:
                    r |= {"m0"}
            else:
                w = R[0]
                r = set().union(*R[1:])
                if "d16" in op:
                    r |= R[0]
        elif op.startswith(("s_cmp", "s_bitcmp", "s_cbranch", "s_branch", "s_barrier", "s_waitcnt", "s_nop",
                            "s_endpgm", "s_setprio", "s_setpc", "s_sleep")):
            r = set().union(*R) if R else set()
        elif op.startswith("v_permlane") and "swap" in op:
            w = R[0] | R[1]
            r = R[0] | R[1]
        else:
            w = R[0] if R else set()
            r = set().union(*R[1:]) if len(R) > 1 else set()
            if op.startswith(("v_fmac", "v_dot2c", "v_writelane")) or "UNUSED_PRESERVE" in self.mods:
                r |= R[0]
            if op.startswith(("v_add_co", "v_sub_co", "v_addc_co")):
                w |= R[1]
            if op.startswith(("s_and_saveexec", "v_cmpx")):
                w |= {"exec"}
        self.w, self.r = w, r
        self.passes = 0
        if self.is_mfma:
            self.passes = 8 if "32x32x16" in op else 4 if ("16x16x32" in op or "16x16x16" in op) else 2 if "4x4x4" in op else None
            assert self.passes
            self.srcab = R[1] | R[2]
            self.srcc = R[3]
        self.wide_store = self.is_vmem and "store" in op and ("x3" in op or "x4" in op)


def need_states(p, c):
    n = 0
    if p.is_mfma:
        tab = {2: (5, 2, 4, 1), 4: (8, 0, 6, 3), 8: (12, 0, 10, 7)}[p.passes]
        if c.is_mfma:
            if p.w & c.srcab:
                n = max(n, tab[0])
            if p.w & c.srcc:
                n = max(n, tab[1] if (p.w == c.srcc and p.passes == c.passes) else tab[2])
            elif p.w & c.w:
                n = max(n, tab[2])
        else:
            if p.w & (c.r | c.w):
                n = max(n, tab[0])
            if (c.is_valu or c.is_ds or c.is_vmem) and (p.srcc & c.w):
                n = max(n, tab[3])
    if p.is_valu:
        vw = {x for x in p.w if x[0] in "va" and x != "vcc"}
        sw = p.w - vw
        if c.is_mfma and (vw & c.r):
            n = max(n, 2)
        if p.is_trans and c.is_valu and not c.is_trans and (vw & c.r):
            n = max(n, 1)
        if p.is_sdwa_dst and c.is_valu and (vw & (c.r | c.w)):
            n = max(n, 1)
        if p.is_dot and (vw & (c.r | c.w)):
            same_c = c.op == p.op and len(c.ops) > 3 and not (vw & (regs_of(c.ops[1]) | regs_of(c.ops[2])))
            if not same_c:
                n = max(n, 3)
        if c.op.startswith(("v_readlane", "v_readfirstlane")) and (vw & c.r):
            n = max(n, 1)
        if (c.op.startswith("v_permlane") or c.is_dpp) and (vw & c.r):
            n = max(n, 2)
        if "exec" in sw:
            if c.is_dpp:
                n = max(n, 5)
            if c.is_mfma or c.op.startswith(("v_readlane", "v_readfirstlane", "v_writelane", "v_permlane")):
                n = max(n, 4)
        if sw:
            if c.is_valu and (sw & c.r):
                n = max(n, 4 if c.op.startswith(("v_readlane", "v_writelane")) else 2)
            if c.is_vmem and (sw & c.r):
                n = max(n, 5)
            if c.is_salu and (sw & c.r):
                n = max(n, 1)
    if p.is_salu and "m0" in p.w and c.lds_dma:
        n = max(n, 1)
    if p.wide_store and (p.r & c.w):
        n = max(n, 2)
    return n


class Emitter:
    def __init__(self):
        self.lines = []
        self.hist = []
        self.lg = []
        self.smem = False
        self.smem_regs = set()
        self.vm = []
        self.count = 0

    def raw(self, text):
        self.lines.append(text)

    def comment(self, text):
        self.lines.append("    ; " + text)

    def _emit(self, ins):
        states = 1
        if ins.op == "s_nop":
            states = int(ins.ops[0]) + 1
        self.lines.append("    " + ins.text)
        self.hist.append((ins, states))
        self.hist = self.hist[-24:]
        self.count += 1

    def wait(self, vm=None, lg=None):
        parts = []
        if vm is not None and len(self.vm) > vm:
            parts.append(f"vmcnt({vm})")
            self.vm = self.vm[len(self.vm) - vm:]
        if lg is not None and (len(self.lg) > lg or (self.smem and lg == 0)):
            if self.smem:
                lg = 0
            lg = min(lg, 15)
            parts.append(f"lgkmcnt({lg})")
            self.lg = self.lg[len(self.lg) - lg:]
            if lg == 0:
                self.smem = False
                self.smem_regs = set()
        if parts:
            self._emit(Ins("s_waitcnt " + " ".join(parts)))

    def wait_tag(self, tag):
        idx = [i for i, d in enumerate(self.vm) if tag in d]
        if idx:
            self.wait(vm=len(self.vm) - 1 - idx[-1])

    def __call__(self, text, tag=None):
        for line in text.strip().split("\n"):
            line = line.split(";")[0].strip()
            if line:
                self.one(line, tag)

    def one(self, text, tag=None):
        c = Ins(text)
        touched = c.r | c.w
        vm = lg = None
        for i, d in enumerate(self.vm):
            if d & touched:
                vm = len(self.vm) - 1 - i
        for i, d in enumerate(self.lg):
            if d & touched:
                lg = len(self.lg) - 1 - i
        if self.smem and (self.smem_regs & touched):
            lg = 0
        self.wait(vm, lg)
        need = 0
        dist = 0
        for p, st in reversed(self.hist):
            need = max(need, need_states(p, c) - dist)
            dist += st
        while need > 0:
            k = min(need, 16)
            self._emit(Ins(f"s_nop {k-1}"))
            need -= k
        self._emit(c)
        if c.is_ds:
            self.lg.append(set(c.w))
        if c.is_smem:
            self.smem = True
            self.smem_regs |= c.w
        if c.is_vmem:
            d = set(c.w)
            if tag:
                d.add(tag)
            self.vm.append(d)
            assert len(self.vm) <= 63

    def prewait(self, *texts):
        touched = set()
        for t in texts:
            c = Ins(t)
            touched |= c.r | c.w
        vm = lg = None
        for i, d in enumerate(self.vm):
            if d & touched:
                vm = len(self.vm) - 1 - i
        for i, d in enumerate(self.lg):
            if d & touched:
                lg = len(self.lg) - 1 - i
        self.wait(vm, lg)

    def barrier(self):
        self.wait(lg=0)
        self("s_barrier")

    def label(self, name):
        self.lines.append(name + ":")

    def snapshot(self):
        return (list(self.hist), [set(x) for x in self.lg], self.smem, set(self.smem_regs), [set(x) for x in self.vm])

    def restore(self, s):
        self.hist, self.lg, self.smem, self.smem_regs, self.vm = list(s[0]), [set(x) for x in s[1]], s[2], set(s[3]), [set(x) for x in s[4]]

    def text(self):
        return "\n".join(self.lines) + "\n"
```

```python
import sys
from asmlib import Emitter

NAME = "standalone__sequential_behavior_din__recsys"
HEADER = open("cdna_kernels/%s.s.ref" % NAME).read().split("; Override launch")[0]

REC = 1040
R_T, R_TF0, R_TF1 = 16, 528, 784
TRAW = 16 * REC
PART = TRAW + 4096
RDY = PART + 5120
TAB = RDY + 1024
NLOC = TAB + 2048
STG = NLOC + 256
TILE = 16 * 528
HT = 8192
SM = STG
HB = SM + 4 * 2304
PB = HB + 7 * HT
PSLOT = [0, 3, 1, 4, 2, 5, 6, 3, 4, 5]
LDS = STG + 131072
assert PB + 7 * TILE <= LDS <= 163840 and STG % 256 == 0 and HB % 256 == 0
CS = 0xBFB8AA3B
SDWA_LO = "dst_sel:DWORD dst_unused:UNUSED_PAD src0_sel:WORD_0 src1_sel:DWORD"
SDWA_HI = "dst_sel:DWORD dst_unused:UNUSED_PAD src0_sel:WORD_1 src1_sel:DWORD"


class Regs:
    def __init__(self, start):
        self.n = start
    def get(self, k=1, align=1):
        self.n = (self.n + align - 1) // align * align
        r = self.n
        self.n += k
        return r


def vr(b, n=1):
    return f"v{b}" if n == 1 else f"v[{b}:{b+n-1}]"


def gen(diag=0, D=6, c0=12, prio=1, upfront=3, hprio=2, hflag='nt', vfirst=0, padfirst=1, GAP=35, KPRE=30, NLEFT=7, prefold=5):
    diag_ids = {0: [], 1: [0, 1, 2, 3, 4, 5, 6, 7, 8, 10, 11, 12, 13, 40, 41, 42, 43],
                2: [7, 10, 11, 12, 13, 14, 15, 16, 17, 18, 19, 20, 21, 40, 41, 42, 43]}[int(diag)]
    e = Emitter()
    R = Regs(1)
    lane, c16, r4, n32, hf, i16r, cc, t0, t1, t2, vdiag, o_w = (R.get() for _ in range(12))
    common_end = R.n

    def stamp(i):
        if i in diag_ids:
            k = 66 + 2 * diag_ids.index(i)
            e.raw(f"    s_memtime s[{k}:{k+1}]")
        else:
            e.comment(f"STAMP {i}")

    if diag:
        e("s_memtime s[62:63]")
        for k in range(len(diag_ids)):
            e(f"s_mov_b32 s{66+2*k}, 0")
    e("s_cmp_ge_u32 s2, 256")
    e("s_cbranch_scc1 L_end")
    e("s_load_dwordx16 s[4:19], s[0:1], 0")
    if diag:
        e("s_load_dwordx2 s[64:65], s[0:1], 72")
    e(f"v_lshrrev_b32 v{t0}, 6, v0")
    e(f"v_and_b32 v{lane}, 63, v0")
    e(f"v_readfirstlane_b32 s3, v{t0}")
    e(f"v_and_b32 v{c16}, 15, v0")
    e(f"v_lshrrev_b32 v{r4}, 4, v{lane}")
    e(f"v_and_b32 v{n32}, 31, v0")
    e(f"v_lshrrev_b32 v{hf}, 5, v{lane}")
    e(f"v_lshrrev_b32 v{i16r}, 2, v{c16}")
    e(f"v_and_b32 v{cc}, 3, v0")
    e(f"v_mov_b32 v{t2}, 0")
    e("s_and_b32 s29, s3, 3")
    e("s_mov_b32 s46, 0xffff0000")
    e(f"s_mov_b32 s47, {CS}")
    e(f"v_lshlrev_b32 v{t0}, 1, v{hf}")
    e(f"v_xor_b32 v{t0}, v{t0}, v{cc}")
    e(f"v_lshrrev_b32 v{t1}, 2, v{lane}")
    e(f"v_lshlrev_b32 v{t1}, 8, v{t1}")
    e(f"v_lshl_add_u32 v{t0}, v{t0}, 4, v{t1}")
    e("s_lshl_b32 s44, s29, 6")
    e(f"v_add_u32 v{o_w}, s44, v{t0}")
    e("s_lshl_b32 s31, s29, 14")
    e(f"s_add_u32 s31, s31, {STG}")
    e("s_mov_b32 s26, 0x20000")
    e("s_mov_b32 s27, 0x20000")
    SC, SA, SB, SD = 0, 8192, 65536, 65536 + 8192

    def dma(slot_off, goff):
        e(f"s_add_u32 m0, s31, {slot_off}")
        e(f"s_mov_b32 s45, {goff}")
        e(f"buffer_load_dwordx4 v{o_w}, s[24:27], s45 offen lds", tag=f"w{slot_off}")

    e("s_cmp_ge_u32 s3, 4")
    e("s_cbranch_scc1 L_main")
    entry = e.snapshot()

    R = Regs(common_end)
    o_m, o_t, o_pf, a_tab, a_rdy, vb2, vpos, vsrc, vbl, vw1, a_tf = (R.get() for _ in range(11))
    a_fs, a_fp, a_fm, a_sl, a_out, vk = (R.get() for _ in range(6))
    a_cu = R.get(2)
    a_pw = R.get(2)
    a_ft = R.get(4)
    so = R.get(14)
    tfa = R.get(14)
    w1b = R.get(7)
    land = R.get(56, 4)
    tmp = R.get(40, 4)
    facc = R.get(8, 4)
    mk = R.get(5)
    tsc = R.get(8, 4)
    junk = R.get(4, 4)
    nv_h = R.n
    e(f"s_setprio {hprio}")
    e("s_mul_i32 s42, s2, 640")
    e(f"v_lshl_add_u32 v{o_m}, v{lane}, 1, s42")
    e(f"v_lshrrev_b32 v{t1}, 4, v0")
    e(f"v_xor_b32 v{t0}, v{t1}, v{c16}")
    e(f"v_lshlrev_b32 v{t0}, 4, v{t0}")
    e(f"v_mul_u32_u24 v{a_tf}, {REC}, v{t1}")
    e(f"v_add_u32 v{a_tf}, v{a_tf}, v{t0}")
    e(f"v_lshl_add_u32 v{t0}, v{t1}, 8, v{t0}")
    e("s_lshl_b32 s44, s2, 12")
    e(f"v_add_u32 v{o_t}, s44, v{t0}")
    e("s_lshr_b32 s44, s2, 3")
    e("s_lshl_b32 s44, s44, 12")
    e(f"v_lshl_add_u32 v{o_pf}, v0, 4, s44")
    e("s_lshl_b32 s44, s29, 10")
    e(f"s_add_u32 m0, s44, {TRAW}")
    e(f"v_mov_b32 v{tmp}, -1")
    e(f"v_lshlrev_b32 v{t1}, 2, v0")
    e.wait(lg=0)
    for j in range(5):
        e(f"global_load_ushort v{mk+j}, v{o_m}, s[8:9] offset:{128*j}")
    e(f"global_load_dwordx4 {vr(junk,4)}, v{o_pf}, s[10:11]")
    e(f"global_load_lds_dwordx4 v{o_t}, s[4:5] nt")
    e(f"global_load_ushort v{vb2}, v{t2}, s[16:17]")
    stamp(0)
    e("s_setprio 0")
    e(f"ds_write_b32 v{t1}, v{tmp} offset:{RDY}")
    e("s_mov_b32 s24, s10")
    e("s_and_b32 s25, s11, 0xffff")
    e("s_mov_b32 s20, s6")
    e("s_and_b32 s21, s7, 0xffff")
    e(f"s_mov_b32 s22, {4096*20*256}")
    e("s_mov_b32 s23, 0x20000")
    e("s_lshl_b32 s44, s29, 3")
    e(f"v_add_u32 v{t0}, s44, v{r4}")
    e(f"v_and_b32 v{t1}, 8, v0")
    e(f"v_lshl_add_u32 v{a_rdy}, v{t0}, 1, v{t1}")
    e(f"v_lshrrev_b32 v{t1}, 1, v{c16}")
    e(f"v_lshl_add_u32 v{vpos}, v{t1}, 5, v{t0}")
    e(f"v_and_b32 v{t1}, 1, v0")
    e(f"v_lshl_add_u32 v{vpos}, v{t1}, 2, v{vpos}")
    e(f"v_xor_b32 v{t1}, v{t0}, v{c16}")
    e(f"v_and_b32 v{t1}, 15, v{t1}")
    for u in range(2):
        if u:
            e(f"v_xor_b32 v{t1}, 4, v{t1}")
        e(f"v_lshlrev_b32 v{a_cu+u}, 4, v{t1}")
        e(f"v_mul_u32_u24 v{a_pw+u}, 528, v{t1}")
        e(f"v_lshl_add_u32 v{a_pw+u}, v{t0}, 4, v{a_pw+u}")
        e(f"v_add_u32 v{a_pw+u}, {PB+64*u}, v{a_pw+u}")
    e("s_lshl_b32 s57, s29, 11")
    e(f"s_add_u32 s57, s57, {HB}")
    e(f"v_mov_b32 v{vk}, 9075")
    e(f"v_lshl_add_u32 v{t1}, v{r4}, 2, v{i16r}")
    e(f"v_lshlrev_b32 v{t1}, 1, v{t1}")
    e(f"v_lshrrev_b32 v{t0}, 1, v{cc}")
    e("s_lshl_b32 s44, s29, 2")
    e(f"v_add_u32 v{t0}, s44, v{t0}")
    e(f"v_xor_b32 v{t0}, v{t0}, v{t1}")
    e(f"v_and_b32 v{t0}, 15, v{t0}")
    e(f"v_lshlrev_b32 v{t0}, 4, v{t0}")
    e(f"v_lshl_add_u32 v{t0}, v{t1}, 8, v{t0}")
    e(f"v_and_b32 v{t1}, 1, v0")
    e(f"v_lshl_add_u32 v{t0}, v{t1}, 3, v{t0}")
    e(f"v_add_u32 v{a_ft}, {HB}, v{t0}")
    for k in range(1, 4):
        e(f"v_xor_b32 v{a_ft+k}, {16*k}, v{a_ft}")
    e("s_mul_i32 s43, s29, 2304")
    e(f"s_add_u32 s43, s43, {SM}")
    e(f"v_mul_u32_u24 v{t0}, 144, v{c16}")
    e(f"v_lshl_add_u32 v{t0}, v{r4}, 4, v{t0}")
    e(f"v_add_u32 v{a_fs}, s43, v{t0}")
    e(f"v_lshlrev_b32 v{a_fp}, 4, v{lane}")
    e(f"v_lshlrev_b32 v{a_fm}, 2, v{lane}")
    e(f"v_and_b32 v{t0}, 0x38, v{lane}")
    e(f"v_lshl_or_b32 v{t0}, v{t1}, 2, v{t0}")
    e(f"v_bfe_u32 v{t1}, v{lane}, 1, 2")
    e(f"v_or_b32 v{t0}, v{t0}, v{t1}")
    e(f"v_lshl_add_u32 v{a_sl}, v{t0}, 1, s43")
    e("s_lshl_b32 s44, s2, 12")
    e("s_lshl_b32 s45, s29, 6")
    e("s_add_u32 s44, s44, s45")
    e(f"v_lshl_add_u32 v{t0}, v{c16}, 8, s44")
    e(f"v_lshl_add_u32 v{a_out}, v{r4}, 3, v{t0}")
    for k in range(8):
        e(f"v_mov_b32 v{facc+k}, 0")
    e("s_mul_i32 s28, s2, 81920")
    e.raw("; HOP_H")
    for j in range(5):
        e(f"v_cmp_neq_f16 s[{32+2*j}:{33+2*j}], 0, v{mk+j}")
    stamp(1)
    for j in range(5):
        e(f"s_bcnt1_i32_b64 s{50+j}, s[{32+2*j}:{33+2*j}]")
    for j in range(1, 5):
        e(f"s_add_u32 s{50+j}, s{50+j}, s{49+j}")
    e("s_add_u32 s30, s54, 31")
    e("s_lshr_b32 s30, s30, 5")
    e("s_max_u32 s30, s30, 1")
    if padfirst:
        e("s_lshl_b32 s55, s30, 5")
        e("s_sub_u32 s55, s55, s54")
    else:
        e("s_mov_b32 s55, 0")

    def select():
        k, kk, lo, hi, ix, cn = range(tmp + 32, tmp + 38)
        e(f"v_subrev_u32 v{k}, s55, v{vpos}")
        e(f"v_mov_b32 v{lo}, s32")
        e(f"v_mov_b32 v{hi}, s33")
        e(f"v_mov_b32 v{ix}, 0")
        e(f"v_mov_b32 v{kk}, v{k}")
        e(f"v_cmp_gt_u32 s[58:59], s54, v{k}")
        for j in range(1, 5):
            e(f"v_cmpx_le_u32 vcc, s{49+j}, v{k}")
            e(f"v_mov_b32 v{lo}, s{32+2*j}")
            e(f"v_mov_b32 v{hi}, s{33+2*j}")
            e(f"v_subrev_u32 v{kk}, s{49+j}, v{k}")
            e(f"v_mov_b32 v{ix}, {64*j}")
        e("s_mov_b64 exec, -1")
        e(f"v_bcnt_u32_b32 v{cn}, v{lo}, 0")
        e(f"v_cmpx_le_u32 vcc, v{cn}, v{kk}")
        e(f"v_sub_u32 v{kk}, v{kk}, v{cn}")
        e(f"v_mov_b32 v{lo}, v{hi}")
        e(f"v_add_u32 v{ix}, 32, v{ix}")
        e("s_mov_b64 exec, -1")
        for st in (16, 8, 4, 2, 1):
            e(f"v_and_b32 v{cn}, {(1 << st) - 1}, v{lo}")
            if st > 1:
                e(f"v_bcnt_u32_b32 v{cn}, v{cn}, 0")
            e(f"v_cmpx_le_u32 vcc, v{cn}, v{kk}")
            if st > 1:
                e(f"v_sub_u32 v{kk}, v{kk}, v{cn}")
                e(f"v_lshrrev_b32 v{lo}, {st}, v{lo}")
            e(f"v_add_u32 v{ix}, {st}, v{ix}")
            e("s_mov_b64 exec, -1")
        e(f"v_mul_u32_u24 v{vbl}, 3277, v{ix}")
        e(f"v_lshl_add_u32 v{vsrc}, v{ix}, 8, s28")
        e(f"v_mov_b32 v{k}, 0x7fffff00")
        e(f"v_lshrrev_b32 v{vbl}, 16, v{vbl}")
        e(f"v_cndmask_b32 v{vsrc}, v{k}, v{vsrc}, s[58:59]")
        e(f"v_mul_u32_u24 v{vbl}, {REC}, v{vbl}")
        e(f"v_lshl_add_u32 v{o_m}, v{ix}, 1, s42")

    bc = lambda k: f"row_newbcast:{k} row_mask:0xf bank_mask:0xf"

    def spread(k):
        e(f"v_add_u32_dpp v{so+k}, v{vsrc}, v{a_cu+k%2} {bc(k)}")
        e(f"v_add_u32_dpp v{tfa+k}, v{vbl}, v{a_cu+k%2} {bc(k)}")
        e(f"v_mov_b32_dpp v{w1b+k//2}, v{vbl} row_newbcast:{k} row_mask:0xf bank_mask:{'0xc' if k % 2 else '0xf'}")

    def mask_gather():
        e(f"global_load_ushort v{vw1}, v{o_m}, s[8:9]")

    def records(n):
        e(f"v_cndmask_b32 v{vw1}, 0, v{vw1}, s[58:59]")
        e(f"v_lshl_or_b32 v{vw1}, v{vw1}, 16, v{vbl}")
        e(f"v_lshlrev_b32 v{a_tab}, 2, v{vpos}")
        e(f"ds_write_b32 v{a_tab}, v{vw1} offset:{TAB}")

    def hist_load(t):
        for u in range(2):
            k = 2 * (t % 7) + u
            e(f"s_add_u32 m0, s57, {HT*t+1024*u}")
            ld = [f"buffer_load_dwordx4 v{so+k}, s[20:23], 0 offen {hflag} lds",
                  f"buffer_load_dwordx4 {vr(land+4*k,4)}, v{so+k}, s[20:23], 0 offen {hflag}"]
            for txt in (ld[::-1] if vfirst else ld):
                e(txt, tag=f"h{t}_{u}")

    select()
    stamp(2)
    e(f"v_lshlrev_b32 v{vb2}, 16, v{vb2}")
    e(f"v_lshlrev_b32 v{t0}, 4, v0")
    e(f"ds_read_b128 {vr(junk,4)}, v{t0} offset:{TRAW}")
    for i in range(16):
        dma((SB if i < 8 else SD) + 1024 * (i % 8), (32768 if i < 8 else 98304) + 4096 * (i % 8))
        if i < 14:
            spread(i)
        if i == 14:
            for d in range(4):
                e(f"v_lshlrev_b32 v{tsc+2*d}, 16, v{junk+d}")
                e(f"v_and_b32 v{tsc+2*d+1}, s46, v{junk+d}")
            for k in range(8):
                e(f"v_mul_f32 v{tsc+k}, s47, v{tsc+k}")
    stamp(3)
    e("s_barrier")
    stamp(5)
    mask_gather()
    hist_load(0)
    e.wait_tag(f"w{SB+1024*7}")
    e("s_barrier")
    for t in range(1, upfront):
        hist_load(t)
    stamp(4)
    e(f"v_mov_b32 v{t0}, s30")
    e(f"s_setprio {hprio}")
    e.prewait(f"v_mov_b32 v0, v{vw1}")
    e("s_barrier")
    stamp(8)
    e(f"ds_write_b128 v{a_tf}, {vr(tsc,4)} offset:{R_TF0}")
    e(f"ds_write_b128 v{a_tf}, {vr(tsc+4,4)} offset:{R_TF1}")
    e(f"ds_write_b16 v{t2}, v{t0} offset:{NLOC}")
    records(14)
    e.barrier()
    stamp(6)
    tf, x, o = tmp, tmp + 16, tmp + 24

    def tf_read(t, u):
        e(f"ds_read_b128 {vr(tf+8*u,4)}, v{tfa+2*(t%7)+u} offset:{R_TF0}")
        e(f"ds_read_b128 {vr(tf+8*u+4,4)}, v{tfa+2*(t%7)+u} offset:{R_TF1}")

    def P(t):
        for u in range(2):
            h = land + 8 * (t % 7) + 4 * u
            e.wait_tag(f"h{t}_{u}")
            e.prewait(f"v_mov_b32 v0, v{tf+8*u+7}")
            for d in range(4):
                e(f"v_lshlrev_b32 v{x+2*d}, 16, v{h+d}")
                e(f"v_and_b32 v{x+2*d+1}, 0xffff0000, v{h+d}")
            for k in range(8):
                e(f"v_mul_f32 v{x+k}, v{x+k}, v{tf+8*u+k}")
            for d in range(4):
                e(f"v_cvt_pk_bf16_f32 v{o+4*u+d}, v{x+2*d}, v{x+2*d+1}")
            if t not in (6, 9):
                tf_read(t + 1, u)
            e(f"ds_write_b128 v{a_pw+u}, {vr(o+4*u,4)} offset:{PSLOT[t]*TILE}")
        e(f"ds_write_b16 v{a_rdy}, v{w1b+t%7} offset:{RDY+64*t}")

    tf_read(0, 0)
    tf_read(0, 1)
    for t in range(10):
        if t == 7:
            e(f"v_add_u32 v{vpos}, 224, v{vpos}")
            select()
            mask_gather()
            for k in range(6):
                spread(k)
            e("s_barrier")
            for tt in (7, 8, 9):
                hist_load(tt)
            records(6)
            tf_read(7, 0)
            tf_read(7, 1)
        P(t)
        stamp(10 + 2 * t)
        if t == 1:
            e("s_setprio 0")
        if t < 9:
            e(f"s_cmp_eq_u32 s30, {t+1}")
            e("s_cbranch_scc1 L_fin")
        if t + upfront < 7:
            hist_load(t + upfront)
        stamp(11 + 2 * t)
    e.label("L_fin")
    e.vm = []
    e.lg = [set(f"v{r}" for r in range(tmp, tmp + 16))]
    p, m, sf, hfr = tmp, tmp + 4, tmp + 8, tmp + 16

    def pair_head():
        e(f"ds_read_b32 v{m}, v{a_fm} offset:{TAB}")
        for k in range(2):
            for u in range(2):
                for j2 in range(2):
                    e(f"ds_read_b64_tr_b16 {vr(hfr+8*k+4*u+2*j2,2)}, v{a_ft+2*u+j2} offset:{HT*k+256*j2}")
        e(f"v_and_b32 v{m+1}, 0xffff0000, v{m}")
        e(f"v_mul_u32_u24_sdwa v{m}, v{m}, v{vk} {SDWA_LO}")
        e(f"v_add_u32_sdwa v{m}, v{m}, v{a_sl} {SDWA_HI}")

    def pair_body(skip, last):
        e(f"ds_read_b128 {vr(p,4)}, v{a_fp} offset:{PART}")
        e(f"v_add_f32 v{p}, v{p}, v{p+1}")
        e(f"v_add_f32 v{p+2}, v{p+2}, v{p+3}")
        e(f"v_add_f32 v{p}, v{p}, v{vb2}")
        e(f"v_add_f32 v{p}, v{p}, v{p+2}")
        e(f"v_mul_f32 v{p}, v{p}, v{m+1}")
        e(f"v_cvt_pk_bf16_f32 v{p}, v{p}, v{p}")
        e(f"ds_write_b16 v{m}, v{p}")
        e(f"ds_read_b128 {vr(sf,4)}, v{a_fs}")
        e(f"ds_read_b128 {vr(sf+4,4)}, v{a_fs} offset:64")
        if not last:
            e(f"ds_write_b16 v{m}, v{t2}")
        e("s_cmp_eq_u32 s53, 1")
        for u in range(2):
            e(f"v_mfma_f32_16x16x32_bf16 {vr(facc+4*u,4)}, {vr(hfr+4*u,4)}, {vr(sf,4)}, {vr(facc+4*u,4)}")
        e(f"s_cbranch_scc1 {skip}")
        for u in range(2):
            e(f"v_mfma_f32_16x16x32_bf16 {vr(facc+4*u,4)}, {vr(hfr+8+4*u,4)}, {vr(sf+4,4)}, {vr(facc+4*u,4)}")
        e.label(skip)

    e(f"ds_write_b128 v{a_fs}, {vr(facc,4)}")
    e(f"ds_write_b128 v{a_fs}, {vr(facc,4)} offset:64")
    e("s_mov_b32 s52, s30")
    e("s_and_b32 s53, s30, 1")
    e("s_sub_u32 s53, 2, s53")
    e(f"s_setprio {hprio}")
    e.barrier()
    stamp(40)
    e.label("L_st")
    pair_head()
    e("s_cmp_le_u32 s52, 2")
    e("s_cbranch_scc1 L_ste")
    head = e.snapshot()
    pair_body("L_sk", False)
    e("s_sub_u32 s52, s52, s53")
    e(f"v_lshl_add_u32 v{a_fm}, s53, 7, v{a_fm}")
    e(f"v_lshl_add_u32 v{a_fp}, s53, 9, v{a_fp}")
    for k in range(4):
        e(f"v_lshl_add_u32 v{a_ft+k}, s53, 13, v{a_ft+k}")
    e("s_mov_b32 s53, 2")
    e("s_branch L_st")
    e.label("L_ste")
    e.restore(head)
    stamp(41)
    e("s_barrier")
    stamp(42)
    pair_body("L_store", True)
    for u in range(2):
        e(f"v_cvt_pk_bf16_f32 v{tmp+2*u}, v{facc+4*u}, v{facc+4*u+1}")
        e(f"v_cvt_pk_bf16_f32 v{tmp+2*u+1}, v{facc+4*u+2}, v{facc+4*u+3}")
        e(f"global_store_dwordx2 v{a_out}, {vr(tmp+2*u,2)}, s[18:19] offset:{32*u}")
    stamp(43)
    e("s_branch L_exit")

    e.label("L_main")
    e.restore(entry)
    R = Regs(common_end)
    o_b1, o_w2, a_wf, a_w16, a_w16x, a_tw, a_xp, a_rx, a_tic, a_ti, a_part, a_plast, vr_ = (R.get() for _ in range(13))
    a_xh = R.get(8)
    a_tb = R.get(4)
    w2f = R.get(8, 4)
    sc = R.get(8, 4)
    wf = R.get(64, 4)
    acc = [R.get(16, 4), R.get(16, 4)]
    ex = R.get(16, 4)
    pk = R.get(8, 4)
    NB = 8
    bb = R.get(4 * NB, 4)
    b1r = R.get(4, 4)
    csv = R.get(2, 2)
    nv_m = R.n
    e("s_lshl_b32 s44, s29, 6")
    e(f"v_lshl_add_u32 v{o_b1}, v{r4}, 3, s44")
    e(f"v_lshl_add_u32 v{o_w2}, v{hf}, 3, s44")
    e(f"v_lshl_add_u32 v{t0}, v{hf}, 3, v{i16r}")
    e(f"v_lshlrev_b32 v{t0}, 6, v{t0}")
    e(f"v_xor_b32 v{t1}, v{r4}, v{hf}")
    e(f"v_and_b32 v{t1}, 1, v{t1}")
    e(f"v_lshl_add_u32 v{t0}, v{t1}, 5, v{t0}")
    e(f"v_lshl_add_u32 v{t0}, v{cc}, 3, v{t0}")
    e(f"v_add_u32 v{a_wf}, s31, v{t0}")
    e(f"v_and_b32 v{t1}, 1, v{r4}")
    e(f"v_lshl_add_u32 v{t0}, v{t1}, 3, v{i16r}")
    e(f"v_lshlrev_b32 v{t0}, 6, v{t0}")
    e(f"v_lshl_add_u32 v{t0}, v{t1}, 5, v{t0}")
    e(f"v_lshl_add_u32 v{t0}, v{cc}, 3, v{t0}")
    e(f"v_lshl_add_u32 v{t0}, v{hf}, 10, v{t0}")
    e(f"v_add_u32 v{a_w16}, s31, v{t0}")
    e(f"v_xor_b32 v{a_w16x}, 32, v{a_w16}")
    e(f"v_mul_u32_u24 v{t0}, {REC}, v{c16}")
    e(f"v_lshl_add_u32 v{t0}, v{r4}, 4, v{t0}")
    e("s_lshl_b32 s50, s29, 7")
    e(f"s_add_u32 s50, s50, {R_T}")
    e(f"v_add_u32 v{a_tw}, s50, v{t0}")
    e(f"v_mul_u32_u24 v{t0}, 528, v{hf}")
    e(f"v_lshl_add_u32 v{t0}, v{n32}, 4, v{t0}")
    e(f"v_add_u32 v{a_xp}, {PB}, v{t0}")
    e(f"v_lshl_add_u32 v{a_tic}, v{hf}, 4, s50")
    e(f"v_lshlrev_b32 v{a_rx}, 1, v{n32}")
    e("s_lshl_b32 s50, s29, 2")
    e(f"v_lshl_add_u32 v{a_part}, v{n32}, 4, s50")
    e(f"s_setprio {prio}")
    e("s_mov_b32 s48, 0x00003f80")
    e("s_mov_b32 s49, 0x3f800000")
    e(f"v_mov_b32 v{csv}, s47")
    e(f"v_mov_b32 v{csv+1}, s47")
    e.wait(lg=0)
    e("s_mov_b32 s24, s10")
    e("s_and_b32 s25, s11, 0xffff")
    for q in range(4):
        for pp in range(2):
            e(f"global_load_dword v{w2f+2*q+pp}, v{o_w2}, s[14:15] offset:{16*q+4*pp}")
    for u in range(2):
        for pp in range(2):
            e(f"global_load_dword v{b1r+2*u+pp}, v{o_b1}, s[12:13] offset:{32*u+4*pp}")
    for s in range(8):
        dma(SC + 1024 * s, 65536 + 4096 * s)
        dma(SA + 1024 * s, 4096 * s)
        if s == 4:
            e.raw("; HOP_M")
            e(f"v_xor_b32 v{t0}, v{hf}, v{c16}")
            e(f"v_lshlrev_b32 v{t0}, 4, v{t0}")
            e(f"v_lshl_add_u32 v{t0}, v{n32}, 8, v{t0}")
            e(f"v_add_u32 v{a_xh}, {HB}, v{t0}")
            for k in range(1, 8):
                e(f"v_xor_b32 v{a_xh+k}, {32*k}, v{a_xh}")
            e(f"v_xor_b32 v{t0}, v{r4}, v{c16}")
            e(f"v_lshlrev_b32 v{t0}, 4, v{t0}")
            e(f"v_lshl_add_u32 v{a_tb}, v{c16}, 8, v{t0}")
            for k in range(1, 4):
                e(f"v_xor_b32 v{a_tb+k}, {64*k}, v{a_tb}")
    stamp(0)
    ra, rc = wf, wf + 32

    def rd_pair(s):
        e.wait_tag(f"w{SA+1024*s}")
        for j in range(2):
            e(f"ds_read_b64_tr_b16 {vr(rc+4*s+2*j,2)}, v{a_wf} offset:{SC+1024*s+256*j}")
        for j in range(2):
            e(f"ds_read_b64_tr_b16 {vr(ra+4*s+2*j,2)}, v{a_wf} offset:{SA+1024*s+256*j}")

    def fold(s):
        x = acc[0]
        e.prewait(f"v_mov_b32 v0, v{ra+4*s+3}")
        for d in range(4):
            e(f"v_lshlrev_b32 v{x+2*d}, 16, v{rc+4*s+d}")
            e(f"v_and_b32 v{x+2*d+1}, s46, v{rc+4*s+d}")
        for d in range(4):
            e(f"v_dot2_f32_bf16 v{x+2*d}, v{ra+4*s+d}, s48, v{x+2*d}")
            e(f"v_dot2_f32_bf16 v{x+2*d+1}, v{ra+4*s+d}, s49, v{x+2*d+1}")
        for d in range(4):
            e(f"v_pk_mul_f32 {vr(x+2*d,2)}, {vr(x+2*d,2)}, {vr(csv,2)}")
        for d in range(4):
            e(f"v_cvt_pk_bf16_f32 v{wf+4*s+d}, v{x+2*d}, v{x+2*d+1}")

    def rd16(off, s2):
        for u in range(2):
            for j in range(2):
                e(f"ds_read_b64_tr_b16 {vr(bb+8*s2+4*u+2*j,2)}, v{a_w16x if u else a_w16} offset:{off+2048*s2+256*j}")

    tfr = acc[1]
    tb1, tcq = pk, ex + 8
    nf = 0
    for s in range(8):
        rd_pair(s)
        if s % 2:
            rd16(SC, s // 2)
        if s >= 1 and nf < prefold and s < 7:
            fold(nf)
            nf += 1
    stamp(1)
    e.barrier()
    stamp(5)
    for s2 in range(4):
        e(f"ds_read_b128 {vr(tfr+4*s2,4)}, v{a_tb+s2} offset:{TRAW}")
    for k in range(nf, 8):
        fold(k)
    for s2 in range(4):
        for u in range(2):
            e(f"v_mfma_f32_16x16x32_bf16 {vr(tcq+4*u,4)}, {vr(bb+8*s2+4*u,4)}, {vr(tfr+4*s2,4)}, {vr(tcq+4*u,4) if s2 else 0}")
            k = 2 * s2 + u
            if k == 0:
                e(f"v_xor_b32 v{t0}, v{i16r}, v{r4}")
                e(f"v_and_b32 v{t0}, 1, v{t0}")
                e(f"v_subrev_u32 v{t0}, 1, v{t0}")
            e(f"v_and_b32 v{w2f+k}, v{t0}, v{w2f+k}")
            if u:
                e(f"v_and_b32 v{tb1+k}, s46, v{b1r+s2}")
            else:
                e(f"v_lshlrev_b32 v{tb1+k}, 16, v{b1r+s2}")
    for a_ in (a_wf, a_w16, a_w16x):
        e(f"v_add_u32 v{a_}, 0x10000, v{a_}")
    e(f"v_lshlrev_b32 v{t0}, 2, v{n32}")
    stamp(2)
    e("s_barrier")
    for s2 in range(4):
        rd16(0, s2)
    for s2 in range(4):
        for u in range(2):
            e(f"v_mfma_f32_16x16x32_bf16 {vr(tb1+4*u,4)}, {vr(bb+8*s2+4*u,4)}, {vr(tfr+4*s2,4)}, {vr(tb1+4*u,4)}")
    for k in range(8):
        e(f"v_sub_f32 v{tb1+k}, v{tb1+k}, v{tcq+k}")
    for k in range(8):
        e(f"v_mul_f32 v{tb1+k}, s47, v{tb1+k}")
    stamp(3)
    e("s_barrier")
    for s in range(8):
        for j in range(2):
            e(f"ds_read_b64_tr_b16 {vr(wf+32+4*s+2*j,2)}, v{a_wf} offset:{8192+1024*s+256*j}")
    for u in range(2):
        e(f"ds_write_b128 v{a_tw}, {vr(tb1+4*u,4)} offset:{64*u}")
    e.wait(lg=2)
    stamp(4)
    e("s_barrier")
    stamp(6)
    e(f"ds_read_u16 v{a_ti}, v{t0} offset:{TAB}")
    e(f"ds_read_u16 v{t1}, v{t2} offset:{NLOC}")
    e(f"v_add_u32 v{a_ti}, v{a_ti}, v{a_tic}")
    for q in range(4):
        e(f"ds_read_b128 {vr(acc[0]+4*q,4)}, v{a_ti} offset:{32*q}")
    e(f"v_readfirstlane_b32 s30, v{t1}")
    e("s_sub_u32 s50, s30, 1")
    e("s_lshl_b32 s50, s50, 9")
    e(f"v_add_u32 v{a_plast}, s50, v{a_part}")
    stamp(8)
    rdy_read = lambda t: f"ds_read_i16 v{vr_}, v{a_rx} offset:{RDY+64*t}"
    rdy_add = f"v_add_co_u32 v{a_ti}, vcc, v{vr_}, v{a_tic}"
    e("s_mov_b32 s56, 0x40000")
    e.label("L_wait0")
    e(rdy_read(0))
    e("s_sub_u32 s56, s56, 1")
    e("s_cbranch_scc1 L_exit")
    e(rdy_add)
    e("s_cbranch_vccnz L_wait0")
    stamp(7)

    def bread(t, s):
        dst = vr(bb + 4 * (s % NB), 4)
        if s < 8:
            return f"ds_read_b128 {dst}, v{a_xh+s} offset:{HT*(t%8)}"
        return f"ds_read_b128 {dst}, v{a_xp} offset:{PSLOT[t]*TILE+1056*(s-8)}"

    def mf(t, s):
        a = acc[t % 2]
        return f"v_mfma_f32_32x32x16_bf16 {vr(a,16)}, {vr(wf+4*s,4)}, {vr(bb+4*(s%NB),4)}, {vr(a,16)}"

    m1 = lambda d: f"v_mfma_f32_16x16x32_bf16 {vr(d,4)}, {vr(w2f,4)}, {vr(pk,4)}, 0"
    m2 = lambda d: f"v_mfma_f32_16x16x32_bf16 {vr(d,4)}, {vr(w2f+4,4)}, {vr(pk+4,4)}, {vr(d,4)}"

    def y_ops(a):
        E = lambda k: (8, f"v_exp_f32 v{ex+k}, v{a+k}")
        A = lambda k: (4, f"v_add_f32 v{ex+k}, 1.0, v{ex+k}")
        Rc = lambda k: (8, f"v_rcp_f32 v{ex+k}, v{ex+k}")
        C = lambda k: (4, f"v_cvt_pk_bf16_f32 v{pk+k}, v{ex+2*k}, v{ex+2*k+1}")
        ops = [E(0), E(1)]
        for k in range(14):
            ops += [E(k + 2), A(k)]
        ops += [Rc(0), A(14), Rc(1), A(15)]
        for k in range(1, 8):
            ops += [Rc(2 * k), Rc(2 * k + 1), C(k - 1)]
        ops += [C(7)]
        return ops

    NY = len(y_ops(0))

    def gaps(t, s_from, s_to, ops, last, state):
        c = c0 if t == 0 else 16 - D
        o = acc[1 - t % 2]
        nxt = [f"ds_read_b128 {vr(o+4*q,4)}, v{a_ti} offset:{32*q}" for q in range(4)] + [bread(t + 1, k) for k in range(D)] if not last else []
        span = 16 - c
        share = [len(nxt) // span + (1 if k < len(nxt) % span else 0) for k in range(span)]
        for s in range(s_from, s_to):
            e(mf(t, s))
            pre = [mf(t, s + 1)] if s < 15 else ([] if last else [mf(t + 1, 0)])
            if s == c - 1 and t < 9:
                pre.append(rdy_add)
            ds = []
            if s + D < 16:
                ds.append(bread(t, s + D))
            if s >= c:
                k0 = sum(share[:s - c])
                ds += nxt[k0:k0 + share[s - c]]
            if s == max(c - 5, 5) and t < 9:
                ds.append(rdy_read(t + 1))
            if s == 4 and t >= 2:
                ds.append(f"ds_write_b32 v{a_part}, v{sc} offset:{PART+512*(t-2)}")
            if not (s == 15 and t == 0):
                e.prewait(*pre)
            for x_ in ds:
                e(x_)
            state["debt"] += GAP - 8 - 4 * len(ds)
            if s == c - 1 and t < 9:
                e(rdy_add)
                state["debt"] -= 8
            if s < 2:
                left = state["left"]
                take = left[:NLEFT // 2] if s == 0 else left[NLEFT // 2:]
                for _, txt in take:
                    e(txt)
                state["debt"] = 0
                continue
            floor = NY - KPRE if s < c else NLEFT
            while len(ops) > floor and (state["debt"] >= ops[0][0] or s in (15, c - 1)):
                cst, txt = ops.pop(0)
                state["debt"] -= cst
                e(txt)
            if s == 2 and t >= 2:
                for mm in (m1(sc), m2(sc)):
                    e(mm)
                    need = 8
                    while need > 0:
                        cst, txt = ops.pop(0)
                        need -= cst
                        e(txt)

    for s in range(D):
        e(bread(0, s))
    tails = {}
    left = []
    for t in range(10):
        c = c0 if t == 0 else 16 - D
        if t == 6:
            e("s_cmp_le_u32 s30, 7")
            e("s_cbranch_scc1 L_nobar")
            e("s_barrier")
            e.label("L_nobar")
        ops = y_ops(acc[1 - t % 2]) if t else []
        state = {"debt": 0, "left": left}
        gaps(t, 0, c, ops, t == 9, state)
        stamp(10 + 2 * t)
        kind = min(t, 1) * (1 + t % 2)
        if t < 9:
            e(f"s_cbranch_vccnz L_slow{t}")
            e.label(f"L_back{t}")
        else:
            e.wait(lg=0)
            e("s_branch L_tail2")
        assert t == 0 or len(ops) == NY - KPRE
        state["debt"] = 0
        if t < 3:
            tails[kind] = (e.snapshot(), t, list(ops), dict(state))
        stamp(11 + 2 * t)
        if t == 7:
            for k in range(8):
                e(f"v_add_u32 v{a_xh+k}, {8*HT}, v{a_xh+k}")
        if t < 9:
            gaps(t, c, 16, ops, False, state)
            left = list(ops)
    for t in range(9):
        e.label(f"L_slow{t}")
        e.hist, e.lg = [], []
        e(f"s_cmp_eq_u32 s30, {t+1}")
        e(f"s_cbranch_scc1 L_tail{min(t, 1) * (1 + t % 2)}")
        e.label(f"L_spin{t}")
        e(rdy_read(t + 1))
        e("s_sub_u32 s56, s56, 1")
        e("s_cbranch_scc1 L_exit")
        e(rdy_add)
        e(f"s_cbranch_vccnz L_spin{t}")
        e(f"s_branch L_back{t}")
    for kind in (2, 1, 0):
        e.label(f"L_tail{kind}")
        snap, t, ops, state = tails[kind]
        e.restore(snap)
        e("s_barrier")
        stamp(40)
        gaps(t, c0 if t == 0 else 16 - D, 16, ops, True, state)
        for _, txt in ops:
            e(txt)
        ops = y_ops(acc[t % 2])
        for i, (cst, txt) in enumerate(ops):
            e(txt)
            if kind and i == 0:
                e(m1(sc + 4))
            if kind and i == 1:
                e(m2(sc + 4))
            if kind and i == 11:
                e(f"ds_write_b32 v{a_plast}, v{sc+4} offset:{PART-512}")
            if i == len(ops) - 5:
                e(m1(sc))
        e(m2(sc))
        e(f"ds_write_b32 v{a_plast}, v{sc} offset:{PART}")
        stamp(41)
        e.barrier()
        if kind:
            e("s_branch L_exit")
    e.label("L_exit")
    if diag:
        e.raw("    s_waitcnt lgkmcnt(0)")
        e(f"v_mov_b32 v{vdiag}, 0")
        e(f"v_writelane_b32 v{vdiag}, s62, 63")
        for k, i in enumerate(diag_ids):
            e(f"v_writelane_b32 v{vdiag}, s{66+2*k}, {i}")
        e("s_lshl_b32 s45, s2, 11")
        e(f"v_lshl_add_u32 v{t0}, v0, 2, s45")
        e(f"global_store_dword v{t0}, v{vdiag}, s[64:65]")
    e.label("L_end")
    body = e.text()
    nv = max(nv_h, nv_m)
    assert nv <= 256, (nv_h, nv_m)
    nfv = (nv + 7) // 8 * 8
    return HEADER + f"""; @launch grid=(256,1,1) block=(512,1,1) lds={LDS}
.amdgcn_target "amdgcn-amd-amdhsa--gfx950"
.text
.globl {NAME}_kernel
.p2align 8
.type {NAME}_kernel,@function
{NAME}_kernel:
{body}    s_endpgm
.section .rodata,"a"
.p2align 6
.amdhsa_kernel {NAME}_kernel
  .amdhsa_next_free_vgpr {nfv}
  .amdhsa_next_free_sgpr {102 if diag else 80}
  .amdhsa_accum_offset {nfv}
  .amdhsa_group_segment_fixed_size 0
  .amdhsa_kernarg_size 80
  .amdhsa_user_sgpr_count 2
  .amdhsa_user_sgpr_kernarg_segment_ptr 1
  .amdhsa_system_sgpr_workgroup_id_x 1
  .amdhsa_float_denorm_mode_32 3
.end_amdhsa_kernel
"""


if __name__ == "__main__":
    kw = {}
    for a in sys.argv[2:]:
        k, _, v = a.partition("=")
        kw[k] = int(v) if v.lstrip('-').isdigit() else v.replace('_', ' ')
    open(sys.argv[1], "w").write(gen(**kw))
```
